```python
import torch

def _softmax(x, axis=-1):
    return torch.softmax(x, dim=axis)
def _gelu(x):
    return torch.nn.functional.gelu(x, approximate="tanh")
def _silu(x):
    return torch.nn.functional.silu(x)
def _sigmoid(x):
    return torch.sigmoid(x)
def _layernorm(x, axis=-1, eps=1e-5):
    m = x.mean(dim=axis, keepdim=True)
    v = x.var(dim=axis, keepdim=True, unbiased=False)
    return (x - m) / torch.sqrt(v + eps)
def _scatter_add(tgt, idx, src, axis=0):
    return tgt.clone().index_add_(axis, idx, src)
def _segment_sum(src, seg, n):
    out = torch.zeros((n,) + src.shape[1:], dtype=src.dtype)
    return out.index_add_(0, seg, src)
def _pad(x, pw):
    flat = tuple(v for pair in reversed(pw) for v in pair)
    return torch.nn.functional.pad(x, flat)

kernel_name = 'parallel_sum__linear_attn_block__dense_activation_relu__prompt'

def setup_inputs():

    _w = (lambda a: (lambda t: t.to(torch.bfloat16) if t.is_floating_point() else t)(torch.as_tensor(a)))
    def _A_setup():
        B, S, D = 1, 2048, 640
        return {
            "x": _w((lambda *s: torch.randn(*s, dtype=torch.bfloat16) * 0.05)(B, S, D)),
            "wqkv": _w((lambda *s: torch.randn(*s, dtype=torch.bfloat16) * 0.2)(D, 3 * D)),
            "wo": _w((lambda *s: torch.randn(*s, dtype=torch.bfloat16) * 0.2)(D, D)),
        }
    _A_in = _A_setup()

    def _B_setup():
        B, S, D, Dff = 1, 2048, 640, 1536
        return {
            "x": _w((lambda *s: torch.randn(*s, dtype=torch.bfloat16) * 0.05)(B, S, D)),
            "w1": _w((lambda *s: torch.randn(*s, dtype=torch.bfloat16) * 0.05)(D, Dff)),
            "w2": _w((lambda *s: torch.randn(*s, dtype=torch.bfloat16) * 0.05)(Dff, D)),
        }
    _B_in = _B_setup()

    return {
        "A_x": _A_in["x"],
        "A_wqkv": _A_in["wqkv"],
        "A_wo": _A_in["wo"],
        "B_x": _B_in["x"],
        "B_w1": _B_in["w1"],
        "B_w2": _B_in["w2"],
    }

def reference(A_x, A_wqkv, A_wo, B_x, B_w1, B_w2):
    def _A_ref(x, wqkv, wo):
        B, S, D = x.shape
        H = 32; Dh = D // H
        qkv = (lambda x, *d: x.permute(*d))((x @ wqkv).reshape(B, S, 3, H, Dh), 2, 0, 3, 1, 4)
        q, k, v = qkv[0], qkv[1], qkv[2]
        phi = lambda t: torch.where(t > 0, t + 1, torch.exp(t)) + 1e-6
        pq, pk = phi(q), phi(k)
        kv = torch.einsum("bhsd,bhse->bhde", pk, v)
        z = torch.einsum("bhsd->bhd", pk)
        num = torch.einsum("bhqd,bhde->bhqe", pq, kv)
        den = torch.einsum("bhqd,bhd->bhq", pq, z)[..., None] + 1e-6
        o = num / den
        return (lambda x, *d: x.permute(*d))(o, 0, 2, 1, 3).reshape(B, S, D) @ wo

    def _B_ref(x, w1, w2):
        h = torch.einsum("bsd,df->bsf", x, w1)
        zero = torch.zeros_like(h)
        h = torch.maximum(h, zero)
        return torch.einsum("bsf,fd->bsd", h, w2)

    x = A_x
    xn = _layernorm(x, axis=-1)
    return x + _A_ref(xn, A_wqkv, A_wo) + _B_ref(xn, B_w1, B_w2)
```

```python
import re

def _regs(tok):
    tok = tok.strip()
    neg = tok.startswith('-')
    if neg: tok = tok[1:]
    m = re.fullmatch(r'abs\((.*)\)', tok) or re.fullmatch(r'\|(.*)\|', tok)
    if m: tok = m.group(1)
    m = re.fullmatch(r'([vsa])\[(\d+):(\d+)\]', tok)
    if m: return [(m.group(1), i) for i in range(int(m.group(2)), int(m.group(3)) + 1)]
    m = re.fullmatch(r'([vsa])(\d+)', tok)
    if m: return [(m.group(1), int(m.group(2)))]
    if tok == 'vcc': return [('s', 106), ('s', 107)]
    if tok == 'vcc_lo': return [('s', 106)]
    if tok == 'vcc_hi': return [('s', 107)]
    if tok == 'exec': return [('x', 0), ('x', 1)]
    if tok == 'm0': return [('m', 0)]
    return []

TRANS = ('v_exp_f32', 'v_log_f32', 'v_rcp_f32', 'v_rsq_f32', 'v_sqrt_f32', 'v_sin_f32', 'v_cos_f32', 'v_rcp_iflag_f32')

class Ins:
    __slots__ = ('text', 'op', 'defs', 'uses', 'kind', 'ws', 'srcC', 'srcAB', 'passes', 'sdata', 'is_label')
    def __init__(self, text):
        self.text = text
        self.defs = []; self.uses = []; self.kind = 'other'; self.ws = 1
        self.srcC = []; self.srcAB = []; self.passes = 0; self.sdata = []; self.is_label = False
        t = text.split(';')[0].strip()
        if t.endswith(':') or t.startswith('.') or not t:
            self.op = ''; self.ws = 0; self.is_label = t.endswith(':'); self.kind = 'dir'; return
        parts = t.split(None, 1)
        op = parts[0]; self.op = op
        rest = parts[1] if len(parts) > 1 else ''
        ops = [o.strip() for o in rest.split(',')] if rest else []
        mods = ''
        if ops:
            sp = ops[-1].split(None, 1)
            if len(sp) > 1: ops[-1] = sp[0]; mods = sp[1]
        base = re.sub(r'_e(32|64)$', '', op)
        R = [_regs(o) for o in ops]
        if base == 's_nop':
            self.ws = int(ops[0], 0) + 1; self.kind = 'nop'
        elif base.startswith('v_mfma'):
            self.kind = 'mfma'; self.defs = R[0]; self.srcAB = R[1] + R[2]; self.srcC = R[3]
            self.uses = R[1] + R[2] + R[3]
            self.passes = 8 if '32x32x16' in base else 4
        elif base.startswith('v_'):
            self.kind = 'valu'
            if base.startswith('v_cmp'):
                self.defs = R[0]; self.uses = sum(R[1:], [])
            elif base.startswith('v_permlane'):
                self.defs = R[0] + R[1]; self.uses = R[0] + R[1]
            elif base in ('v_add_co_u32', 'v_sub_co_u32'):
                self.defs = R[0] + R[1]; self.uses = sum(R[2:], [])
            elif base in ('v_addc_co_u32',):
                self.defs = R[0] + R[1]; self.uses = sum(R[2:], [])
            elif base == 'v_nop':
                pass
            else:
                self.defs = R[0]; self.uses = sum(R[1:], [])
                if base in ('v_fmac_f32', 'v_dot2c_f32_bf16', 'v_writelane_b32'): self.uses = self.uses + R[0]
                if base == 'v_cndmask_b32' and len(ops) == 3: self.uses += _regs('vcc')
        elif base.startswith('ds_'):
            self.kind = 'ds'
            if base.startswith('ds_read') or base.startswith('ds_bpermute') or base.startswith('ds_swizzle'):
                self.defs = R[0]; self.uses = sum(R[1:], [])
            else:
                self.uses = sum(R, [])
        elif base.startswith('buffer_') or base.startswith('global_'):
            self.kind = 'vmem'
            lds = ' lds' in (' ' + mods) or '_lds_' in base
            if base in ('buffer_wbl2', 'buffer_inv'): pass
            elif lds:
                self.uses = sum(R, []) + [('m', 0)]; self.kind = 'vmem_lds'
            elif 'load' in base:
                self.defs = R[0]; self.uses = sum(R[1:], [])
            else:
                self.uses = sum(R, [])
                data = R[0] if base.startswith('buffer_') else R[1]
                if len(data) >= 3: self.sdata = data
                if 'atomic' in base and 'sc0' in mods: self.defs = R[0]
        elif base.startswith('s_'):
            self.kind = 'salu'
            if base.startswith('s_cmp') or base.startswith('s_cbranch') or base in ('s_branch', 's_waitcnt', 's_barrier', 's_endpgm', 's_sleep', 's_setprio'):
                self.uses = sum(R, [])
            else:
                self.defs = R[0] if R else []; self.uses = sum(R[1:], [])
                if 'saveexec' in base: self.defs = self.defs + _regs('exec')
        self.op = base

def need(prod, cons):
    n = 0
    pd = set(prod.defs)
    if prod.kind == 'valu':
        vd = {r for r in pd if r[0] in 'va'}
        sd = {r for r in pd if r[0] == 's'}
        if vd:
            if cons.kind == 'mfma' and vd & set(cons.uses): n = max(n, 2)
            if cons.kind == 'valu':
                if cons.op.startswith('v_permlane') and vd & set(cons.uses): n = max(n, 2)
                if cons.op in ('v_readfirstlane_b32', 'v_readlane_b32') and vd & set(cons.uses): n = max(n, 1)
                if 'dpp' in cons.text or 'row_' in cons.text or 'quad_perm' in cons.text:
                    if vd & set(cons.uses): n = max(n, 2)
                if prod.op in TRANS and cons.op not in TRANS and vd & set(cons.uses): n = max(n, 1)
            if prod.op in TRANS and cons.kind in ('vmem','ds','vmem_lds') and vd & set(cons.uses): n = max(n, 1)
            if prod.op.startswith('v_dot'):
                if cons.op == prod.op:
                    ab = set(cons.uses) - set(cons.defs)
                    if vd & ab: n = max(n, 3)
                elif vd & (set(cons.uses) | set(cons.defs)): n = max(n, 3)
            if 'op_sel' in prod.text or 'sdwa' in prod.text:
                if cons.kind == 'valu' and vd & (set(cons.uses) | set(cons.defs)): n = max(n, 1)
        if sd:
            if cons.kind in ('valu', 'mfma') and sd & set(cons.uses):
                n = max(n, 4 if cons.op in ('v_readlane_b32', 'v_writelane_b32') else 2)
            if cons.kind in ('vmem', 'vmem_lds') and sd & set(cons.uses): n = max(n, 5)
            if cons.kind == 'salu' and sd & set(cons.uses): n = max(n, 1)
    if prod.kind == 'mfma':
        P = prod.passes
        if cons.kind == 'mfma':
            if pd & set(cons.srcAB): n = max(n, 12 if P == 8 else 8)
            if pd & set(cons.srcC):
                if prod.defs == cons.srcC and cons.passes == P: pass
                else: n = max(n, 10 if P == 8 else 6)
            elif pd & set(cons.defs): n = max(n, 10 if P == 8 else 6)
        elif cons.kind in ('valu', 'vmem', 'ds', 'vmem_lds'):
            if pd & (set(cons.uses) | set(cons.defs)): n = max(n, 12 if P == 8 else 8)
        if cons.kind == 'valu' and set(prod.srcC) & set(cons.defs): n = max(n, 7 if P == 8 else 3)
    if prod.kind == 'salu' and ('m', 0) in pd and cons.kind == 'vmem_lds': n = max(n, 1)
    if prod.sdata and set(prod.sdata) & set(cons.defs): n = max(n, 2 if cons.kind in ('valu','mfma') else 1)
    return n

class Asm:
    def __init__(self):
        self.ins = []
    def __call__(self, text):
        for l in text.strip('\n').split('\n'):
            if l.strip(): self.ins.append(Ins(l.strip()))
    def label(self, n): self.ins.append(Ins(n + ':'))
    def fix(self):
        out = []
        for c in self.ins:
            if c.kind != 'dir':
                dist = 0; req = 0
                for p in reversed(out):
                    if p.kind == 'dir': continue
                    if p.op in ('s_endpgm', 's_branch'): break
                    k = need(p, c)
                    if k > dist: req = max(req, k - dist)
                    dist += p.ws
                    if dist >= 20: break
                while req > 0:
                    k = min(req, 16)
                    out.append(Ins(f's_nop {k-1}')); req -= k
            out.append(c)
        self.ins = out
    def check_backedges(self):
        lab = {c.text.split(':')[0].strip(): i for i, c in enumerate(self.ins) if c.is_label}
        errs = []
        for i, c in enumerate(self.ins):
            if c.op.startswith('s_cbranch') or c.op == 's_branch':
                tgt = c.text.split()[-1]
                if tgt in lab:
                    j = lab[tgt]
                    tail = [p for p in self.ins[max(0, i - 40):i + 1] if p.kind != 'dir']
                    head = [p for p in self.ins[j:j + 40] if p.kind != 'dir']
                    for hi, h in enumerate(head):
                        dist = sum(x.ws for x in head[:hi])
                        if dist >= 20: break
                        for p in reversed(tail):
                            k = need(p, h)
                            if k > dist: errs.append(f"branch hazard: [{p.text}] -> [{h.text}] need {k} have {dist}")
                            dist += p.ws
                            if dist >= 20: break
        return errs
    def text(self):
        o = []
        for c in self.ins:
            o.append(c.text if (c.is_label or c.text.startswith('.')) else '    ' + c.text)
        return '\n'.join(o) + '\n'
```

```python
import sys, struct
from asmlib import Asm

def f32(x): return "0x%08x" % struct.unpack("<I", struct.pack("<f", x))[0]

NAME = "parallel_sum__linear_attn_block__dense_activation_relu__prompt"
HO_OFF = 0
WP_OFF = 0x900000
KVP_OFF = 0xC00000
WS_SIZE = 0xD00000
NKS = 68

def srd(a, d, base, size):
    a(f"s_mov_b32 s{d}, s{base}\ns_and_b32 s{d+1}, s{base+1}, 0xffff\ns_mov_b32 s{d+2}, {size}\ns_mov_b32 s{d+3}, 0x20000")

X_SRD, WQ_SRD, W1_SRD, WS_SRD, PK_SRD, DBG_SRD = 20, 24, 28, 32, 36, 40
S_RBLK, S_J8, S_TYPE = 44, 45, 46

def colsum_reduce(a, ncol, tag, cs_off, csf_off):
    a(f"""
    s_lshl_b32 s60, s3, 6
    v_add_u32 v1, s60, v0
    v_cmp_gt_u32 vcc, {ncol}, v1
    s_and_saveexec_b64 s[60:61], vcc
    s_cbranch_execz L_csskip_{tag}
    v_lshlrev_b32 v1, 2, v1
    """)
    for i in range(8):
        a(f"ds_read_b32 v{2+i}, v1 offset:{cs_off + i*ncol*4}")
    a("s_waitcnt lgkmcnt(0)")
    a("v_add_f32 v2, v2, v3\nv_add_f32 v4, v4, v5\nv_add_f32 v6, v6, v7\nv_add_f32 v8, v8, v9")
    a("v_add_f32 v2, v2, v4\nv_add_f32 v6, v6, v8\nv_add_f32 v2, v2, v6")
    a(f"ds_write_b32 v1, v2 offset:{csf_off}")
    a("s_waitcnt lgkmcnt(0)")
    a.label(f"L_csskip_{tag}")
    a("s_mov_b64 exec, s[60:61]")

def loader_setup(a, typ):
    a("""
    s_sub_u32 s50, s3, 4
    v_lshrrev_b32 v1, 3, v0
    v_and_b32 v2, 7, v0
    v_lshrrev_b32 v3, 4, v0
    v_xor_b32 v4, v2, v3
    v_lshlrev_b32 v4, 4, v4
    s_lshl_b32 s51, s50, 5
    v_add_u32 v5, s51, v1
    v_mul_u32_u24 v5, 1280, v5
    v_add_u32 v10, v5, v4
    v_add_u32 v11, 10240, v10
    v_xor_b32 v11, 64, v11
    v_add_u32 v12, 20480, v10
    v_add_u32 v13, 20480, v11
    v_and_b32 v6, 1, v3
    v_lshlrev_b32 v6, 2, v6
    v_xor_b32 v6, v2, v6
    v_lshlrev_b32 v6, 4, v6
    s_lshl_b32 s51, s50, 4
    v_add_u32 v7, s51, v1
    v_mul_u32_u24 v8, 3840, v7
    v_add_u32 v14, v8, v6
    v_add_u32 v15, 30720, v14
    v_lshrrev_b32 v8, 2, v0
    v_add_u32 v8, s51, v8
    v_mul_u32_u24 v8, 3840, v8
    v_and_b32 v9, 1, v0
    v_lshlrev_b32 v9, 4, v9
    v_add3_u32 v18, v8, v9, 64
    v_add_u32 v18, 64, v18
    """)
    if typ == 'B':
        a("""
        v_mul_u32_u24 v8, 3072, v7
        v_add_u32 v16, v8, v6
        v_add_u32 v17, 24576, v16
        """)
    else:
        a("""
        v_bfe_u32 v9, v0, 1, 1
        v_mul_u32_u24 v9, 1152, v9
        v_add_u32 v18, v18, v9
        """)
    a(f"s_mul_i32 s52, s{S_RBLK}, 163840")
    a(f"s_mul_i32 s53, s{S_J8}, 160")
    if typ == 'B':
        a(f"s_mul_i32 s54, s{S_J8}, 384")
        a("s_mul_i32 s55, s50, 13312")
    else:
        a("s_add_u32 s53, s53, 1280")
        a("s_add_u32 s54, s53, 1312")
        a("s_mul_i32 s55, s50, 9216")
    a("s_mov_b32 s56, s55")
    a("s_waitcnt lgkmcnt(0)")
    srd(a, X_SRD, 4, 2048*1280)
    srd(a, WQ_SRD, 6, 640*3840)
    if typ == 'B': srd(a, W1_SRD, 8, 640*3072)

def issue_stage(a, typ):
    LWS = 13312 if typ == 'B' else 9216
    NS = 3 if typ == 'B' else 4
    for ii in range(4):
        a(f"s_add_u32 m0, s55, {ii*1024}")
        a(f"buffer_load_dwordx4 v{10+ii}, s[{X_SRD}:{X_SRD+3}], s52 offen lds")
    if typ == 'B':
        for c in range(3):
            for i in range(2):
                a(f"s_add_u32 m0, s55, {(4+2*c+i)*1024 - 128*c}")
                a(f"buffer_load_dwordx4 v{16+i}, s[{W1_SRD}:{W1_SRD+3}], s54 offen offset:{128*c} lds")
        for i in range(2):
            a(f"s_add_u32 m0, s55, {(10+i)*1024}")
            a(f"buffer_load_dwordx4 v{14+i}, s[{WQ_SRD}:{WQ_SRD+3}], s53 offen lds")
        a(f"s_add_u32 m0, s55, {12*1024}")
        a(f"buffer_load_dwordx4 v18, s[{WQ_SRD}:{WQ_SRD+3}], s53 offen lds")
        a("s_add_u32 s54, s54, 196608")
    else:
        for i in range(2):
            a(f"s_add_u32 m0, s55, {(4+i)*1024}")
            a(f"buffer_load_dwordx4 v{14+i}, s[{WQ_SRD}:{WQ_SRD+3}], s53 offen lds")
        a(f"s_add_u32 m0, s55, {8*1024}")
        a(f"buffer_load_dwordx4 v18, s[{WQ_SRD}:{WQ_SRD+3}], s53 offen lds")
        for i in range(2):
            a(f"s_add_u32 m0, s55, {(6+i)*1024}")
            a(f"buffer_load_dwordx4 v{14+i}, s[{WQ_SRD}:{WQ_SRD+3}], s54 offen lds")
        a("s_add_u32 s54, s54, 245760")
    a("s_add_u32 s52, s52, 128")
    a("s_add_u32 s53, s53, 245760")
    a(f"s_add_u32 s55, s55, {4*LWS}")
    a(f"s_add_u32 s57, s56, {NS*4*LWS}")
    a("s_cmp_ge_u32 s55, s57")
    a("s_cselect_b32 s55, s56, s55")

def loader_main(a, typ):
    NS = 3 if typ == 'B' else 4
    NL = 13 if typ == 'B' else 9
    a("s_mov_b32 s58, 0")
    a.label(f"L_ldp_{typ}")
    issue_stage(a, typ)
    a("s_add_u32 s58, s58, 1")
    a(f"s_cmp_lt_u32 s58, {NS}")
    a(f"s_cbranch_scc1 L_ldp_{typ}")
    a(f"s_cmp_eq_u32 s58, {NS}")
    a(f"s_cbranch_scc0 L_ldw_{typ}")
    a(f"s_waitcnt vmcnt({NL*(NS-1)})")
    a("s_barrier")
    a.label(f"L_ldw_{typ}")
    a(f"s_waitcnt vmcnt({NL*(NS-2)})")
    a("s_barrier")
    a("s_cmp_lt_u32 s58, 10")
    a(f"s_cbranch_scc1 L_ldp_{typ}_again")
    for r in range(NS-3, -1, -1):
        a(f"s_waitcnt vmcnt({NL*r})")
        a("s_barrier")
    a(f"s_branch L_ldend_{typ}")
    a.label(f"L_ldp_{typ}_again")
    a(f"s_branch L_ldp_{typ}")
    a.label(f"L_ldend_{typ}")

ACC0 = 96
AF = 36
BF = 44
CS = 24
def consumer_main(a, typ):
    NB = 9 if typ == 'B' else 5
    LWS = 13312 if typ == 'B' else 9216
    NS = 3 if typ == 'B' else 4
    SLOT = 4*LWS
    if typ == 'B':
        blk = [(18 if b % 2 == 0 else 19, (4+2*(b//2))*1024, 512) for b in range(8)] + [(20, 12*1024, 256)]
    else:
        blk = [(18, 4096, 512), (19, 4096, 512), (20, 8192, 256), (18, 6144, 512), (19, 6144, 512)]
    a(f"""
    v_and_b32 v1, 31, v0
    v_lshrrev_b32 v2, 5, v0
    v_bfe_u32 v3, v0, 1, 3
    v_xor_b32 v3, v3, v2
    v_lshlrev_b32 v3, 4, v3
    v_lshl_add_u32 v3, v1, 7, v3
    """)
    for p in range(4):
        a(f"s_add_u32 s60, s3, {p}\ns_and_b32 s60, s60, 3\ns_mul_i32 s{64+p}, s60, {LWS}\ns_lshl_b32 s60, s60, 5")
        a(f"v_xor_b32 v{10+p}, s60, v3")
    a(f"""
    v_bfe_u32 v4, v0, 2, 2
    v_lshl_add_u32 v5, v2, 3, v4
    v_bfe_u32 v6, v0, 4, 1
    v_and_b32 v7, 3, v0
    v_lshlrev_b32 v7, 3, v7
    v_lshl_add_u32 v7, v6, 5, v7
    v_lshl_add_u32 v16, v5, 6, v7
    v_lshrrev_b32 v4, 1, v4
    v_lshl_add_u32 v7, v4, 6, v7
    v_lshl_add_u32 v14, v5, 7, v7
    v_xor_b32 v15, 64, v14
    s_mul_i32 s68, s3, {LWS}
    s_mov_b32 s69, 0x3f803f80
    s_mov_b32 s70, 0
    s_mov_b32 s71, {SLOT}
    s_mov_b32 s72, 0
    v_mov_b32 v21, 0
    v_mov_b32 v22, 0
    """)
    for b in range(NB): a(f"v_mov_b32 v{CS+b}, 0")
    for i in range(NB*8): a(f"v_mov_b64 v[{ACC0+2*i}:{ACC0+2*i+1}], 0")
    def addr(p, slot):
        a(f"s_add_u32 s60, s{slot}, s{64+p}")
        a(f"s_add_u32 s61, s{slot}, s68")
        a(f"v_add_u32 v18, s60, v14\nv_add_u32 v19, s60, v15\nv_add_u32 v20, s60, v16\nv_add_u32 v17, s61, v{10+p}")
    def rdA(par): a(f"ds_read_b128 v[{AF+4*par}:{AF+4*par+3}], v17")
    def rdB(b):
        r, off, st = blk[b]
        a(f"ds_read_b64_tr_b16 v[{BF+4*b}:{BF+4*b+1}], v{r} offset:{off}")
        a(f"ds_read_b64_tr_b16 v[{BF+4*b+2}:{BF+4*b+3}], v{r} offset:{off+st}")
    def mfma(b, par):
        A = f"v[{AF+4*par}:{AF+4*par+3}]"; B = f"v[{BF+4*b}:{BF+4*b+3}]"; C = f"v[{ACC0+16*b}:{ACC0+16*b+15}]"
        if typ == 'B': a(f"v_mfma_f32_32x32x16_bf16 {C}, {B}, {A}, {C}")
        else: a(f"v_mfma_f32_32x32x16_bf16 {C}, {A}, {B}, {C}")
    def dots(p, b, par):
        if p == 0:
            for i in range(4): a(f"v_dot2c_f32_bf16 v{CS+b}, s69, v{BF+4*b+i}")
        sl = []
        for i in range(4): sl += [f"v_dot2c_f32_bf16 v21, s69, v{AF+4*par+i}", f"v_dot2c_f32_bf16 v22, v{AF+4*par+i}, v{AF+4*par+i}"]
        per = (8 + NB - 2) // (NB - 1) if NB < 9 else 1
        for s in sl[b*per:(b+1)*per]: a(s)
    addr(0, 70)
    a("s_barrier")
    rdA(0)
    for b in range(NB): rdB(b)
    a.label(f"L_main_{typ}")
    for p in range(3):
        par = p & 1
        addr(p+1, 70)
        rdA(par ^ 1)
        for b in range(NB):
            if b % 2 == 0: a(f"s_waitcnt lgkmcnt({min(15, 2*NB-3 if b < NB-1 else 2*NB-1)})")
            mfma(b, par); dots(p, b, par); rdB(b)
    par = 1
    addr(0, 71)
    a(f"s_waitcnt lgkmcnt({min(15, 2*(NB-2))})")
    mfma(0, par); dots(3, 0, par)
    mfma(1, par); dots(3, 1, par)
    a("s_waitcnt lgkmcnt(0)")
    a("s_barrier")
    rdA(0); rdB(0); rdB(1)
    for b in range(2, NB):
        mfma(b, par); dots(3, b, par); rdB(b)
    a(f"""
    s_mov_b32 s70, s71
    s_add_u32 s71, s71, {SLOT}
    s_cmp_ge_u32 s71, {NS*SLOT}
    s_cselect_b32 s71, 0, s71
    s_add_u32 s72, s72, 1
    s_cmp_lt_u32 s72, 10
    s_cbranch_scc1 L_main_{typ}
    s_waitcnt lgkmcnt(0)
    """)
    a(f"""
    v_mov_b32 v2, v21
    v_mov_b32 v3, v22
    v_permlane32_swap_b32 v21, v2
    v_permlane32_swap_b32 v22, v3
    v_add_f32 v21, v21, v2
    v_add_f32 v22, v22, v3
    v_mul_f32 v21, {f32(1.0/640)}, v21
    v_mul_f32 v22, {f32(1.0/640)}, v22
    v_fma_f32 v22, -v21, v21, v22
    v_max_f32 v22, 0, v22
    v_add_f32 v22, {f32(1e-5)}, v22
    v_rsq_f32 v22, v22
    v_mul_f32 v23, v21, v22
    """)
    ncol = NB*32
    a(f"""
    v_lshrrev_b32 v2, 5, v0
    s_lshl_b32 s60, s3, 1
    v_add_u32 v2, s60, v2
    v_mul_u32_u24 v2, {ncol*4}, v2
    v_and_b32 v1, 31, v0
    v_lshl_add_u32 v2, v1, 2, v2
    """)
    for b in range(NB): a(f"ds_write_b32 v2, v{CS+b} offset:{128*b}")
    a("s_waitcnt lgkmcnt(0)")

LOG2E = 1.4426950408889634
def phi_pairs(a, regs_pairs, tmp):
    n = len(regs_pairs)
    for i, r in enumerate(regs_pairs):
        a(f"v_pk_mul_f32 v[{tmp+2*i}:{tmp+2*i+1}], v[{r}:{r+1}], s[62:63]")
    for i, r in enumerate(regs_pairs):
        a(f"v_exp_f32_e64 v{tmp+2*i}, v{tmp+2*i} clamp")
        a(f"v_max_f32 v{r}, s64, v{r}")
        a(f"v_exp_f32_e64 v{tmp+2*i+1}, v{tmp+2*i+1} clamp")
        a(f"v_max_f32 v{r+1}, s64, v{r+1}")
    for i, r in enumerate(regs_pairs):
        a(f"v_pk_add_f32 v[{r}:{r+1}], v[{r}:{r+1}], v[{tmp+2*i}:{tmp+2*i+1}]")

B_CS, B_CSF, B_KVI = 0, 9216, 16384
def consumer_epi_B(a):
    a("s_barrier")
    colsum_reduce(a, 288, "cB", B_CS, B_CSF)
    a("s_barrier")
    srd(a, WS_SRD, 14, WS_SIZE)
    a(f"""
    v_lshrrev_b32 v3, 5, v0
    v_lshlrev_b32 v1, 4, v3
    v_add_u32 v1, {B_CSF}, v1
    v_bfe_u32 v4, v0, 4, 1
    v_lshlrev_b32 v2, 10, v4
    v_lshl_add_u32 v2, v3, 8, v2
    v_and_b32 v4, 15, v0
    v_lshl_add_u32 v2, v4, 4, v2
    s_lshr_b32 s60, s3, 1
    s_lshl_b32 s61, s{S_RBLK}, 1
    s_add_u32 s60, s60, s61
    s_mul_i32 s60, s60, {NKS*4096}
    s_and_b32 s61, s3, 1
    s_lshl_b32 s61, s61, 11
    s_add_u32 s65, s60, s61
    s_mul_i32 s60, s{S_J8}, {6*4096}
    s_add_u32 s66, s65, s60
    s_mov_b32 s62, {f32(LOG2E)}
    s_mov_b32 s63, {f32(LOG2E)}
    s_mov_b32 s64, {f32(1e-6)}
    s_mov_b32 s74, {f32(-1e-6)}
    s_mov_b32 s75, {f32(-1e-6)}
    """)
    def rdcs(b):
        base = 44 + 16*(b & 1)
        for j in range(4 if b < 8 else 2):
            a(f"ds_read_b128 v[{base+4*j}:{base+4*j+3}], v1 offset:{128*b+32*j}")
    rdcs(0)
    for b in range(9):
        if b < 8:
            rdcs(b+1)
            a(f"s_waitcnt lgkmcnt({4 if b+1 < 8 else 2})")
        else:
            a("s_waitcnt lgkmcnt(0)")
        cs = 44 + 16*(b & 1); acc = ACC0 + 16*b
        np_ = 8 if b < 8 else 4
        for i in range(np_):
            if b < 6:
                a(f"v_pk_mul_f32 v[{cs+2*i}:{cs+2*i+1}], v[{cs+2*i}:{cs+2*i+1}], v[22:23] op_sel:[0,1] op_sel_hi:[1,1]")
            else:
                a(f"v_pk_fma_f32 v[{cs+2*i}:{cs+2*i+1}], v[{cs+2*i}:{cs+2*i+1}], v[22:23], s[74:75] op_sel:[0,1,0] op_sel_hi:[1,1,1]")
        for i in range(np_):
            a(f"v_pk_fma_f32 v[{acc+2*i}:{acc+2*i+1}], v[{acc+2*i}:{acc+2*i+1}], v[22:23], v[{cs+2*i}:{cs+2*i+1}] op_sel:[0,0,0] op_sel_hi:[1,0,1] neg_lo:[0,0,1] neg_hi:[0,0,1]")
        if b >= 6:
            phi_pairs(a, [acc+2*i for i in range(np_)], cs)
        for i in range(np_):
            a(f"v_cvt_pk_bf16_f32 v{acc+i}, v{acc+2*i}, v{acc+2*i+1}")
        if b < 6:
            for i in range(8): a(f"v_pk_max_i16 v{acc+i}, v{acc+i}, 0")
            a(f"buffer_store_dwordx4 v[{acc}:{acc+3}], v2, s[{WS_SRD}:{WS_SRD+3}], s66 offen")
            a(f"buffer_store_dwordx4 v[{acc+4}:{acc+7}], v2, s[{WS_SRD}:{WS_SRD+3}], s66 offen offset:512")
            a("s_add_u32 s66, s66, 4096")
    pq = lambda t: ACC0 + 16*(6 + (t >> 1)) + 4*(t & 1)
    a(f"""
    v_and_b32 v4, 31, v0
    v_mul_u32_u24 v4, 160, v4
    v_lshl_add_u32 v4, v3, 4, v4
    v_add_u32 v4, {B_KVI}, v4
    v_cmp_lt_u32 s[76:77], 31, v0
    s_barrier
    """)
    need = [(0, t) for t in (0, 1, 2)] + [(1, t) for t in (1, 2, 3, 4)] + [(2, t) for t in range(5)]
    FR = 44
    for i, (eb, t) in enumerate(need):
        a(f"ds_read_b128 v[{FR+4*i}:{FR+4*i+3}], v4 offset:{eb*5120+32*t}")
    NUM = ACC0
    first = set()
    order = [7, 8, 9, 10, 11, 0, 1, 2, 3, 4, 5, 6]
    a("s_waitcnt lgkmcnt(0)")
    for i in order:
        eb, t = need[i]
        C = f"v[{NUM+16*eb}:{NUM+16*eb+15}]"
        a(f"v_mfma_f32_32x32x16_bf16 {C}, v[{FR+4*i}:{FR+4*i+3}], v[{pq(t)}:{pq(t)+3}], {C if eb in first else 0}")
        first.add(eb)
    for h in range(4): a(f"v_add_f32 v{4+h}, s64, v{NUM+32+8+h}")
    for h in range(4): a(f"v_rcp_f32 v{4+h}, v{4+h}")
    a(f"s_mul_i32 s60, s{S_J8}, 5")
    for cc in range(5):
        b = cc >> 1
        for jj in range(2):
            j = 2*(cc & 1) + jj
            h0 = (32*b + 8*j)//20; h1 = (32*b + 8*j + 4)//20
            if h0 != h1:
                a(f"v_cndmask_b32 v8, v{4+h0}, v{4+h1}, s[76:77]"); sc = 8
            else: sc = 4 + h0
            r = NUM + 16*b + 4*j
            for q in range(4): a(f"v_mul_f32 v{r+q}, v{sc}, v{r+q}")
        r = NUM + 16*b + 8*(cc & 1)
        for i in range(4): a(f"v_cvt_pk_bf16_f32 v{r+i}, v{r+2*i}, v{r+2*i+1}")
        a(f"""
        s_add_u32 s61, s60, {cc}
        s_lshr_b32 s67, s61, 1
        s_add_u32 s67, s67, 48
        s_lshl_b32 s67, s67, 12
        s_and_b32 s61, s61, 1
        s_lshl_b32 s61, s61, 9
        s_add_u32 s67, s67, s61
        s_add_u32 s67, s67, s65
        buffer_store_dwordx4 v[{r}:{r+3}], v2, s[{WS_SRD}:{WS_SRD+3}], s67 offen
        """)
    a("s_endpgm")

def loader_epi_B(a):
    a("s_barrier")
    a(f"""
    s_lshl_b32 s60, s50, 6
    v_add_u32 v20, s60, v0
    v_lshlrev_b32 v1, 6, v20
    v_mov_b32 v4, 0
    v_mov_b32 v5, 0
    v_mov_b32 v6, 0
    v_mov_b32 v7, 0
    ds_write_b128 v1, v[4:7] offset:{B_KVI}
    ds_write_b128 v1, v[4:7] offset:{B_KVI+16}
    ds_write_b128 v1, v[4:7] offset:{B_KVI+32}
    ds_write_b128 v1, v[4:7] offset:{B_KVI+48}
    s_waitcnt lgkmcnt(0)
    s_barrier
    """)
    colsum_reduce(a, 288, "lB", B_CS, B_CSF)
    a("s_barrier")
    srd(a, WS_SRD, 14, WS_SIZE)
    srd(a, DBG_SRD, 12, 256)
    for i in range(2):
        qd = 20 if i == 0 else 23
        if i == 1: a("v_add_u32 v23, 256, v20")
        a(f"""
        v_mul_u32_u24 v1, 205, v{qd}
        v_lshrrev_b32 v1, 10, v1
        v_mul_u32_u24 v2, 5, v1
        v_sub_u32 v2, v{qd}, v2
        v_mul_u32_u24 v3, 205, v1
        v_lshrrev_b32 v3, 12, v3
        v_subrev_u32 v4, 80, v1
        v_cmp_lt_u32 vcc, 79, v1
        v_cndmask_b32 v3, v3, v4, vcc
        v_mul_u32_u24 v3, 5, v3
        v_add_u32 v3, v3, v2
        v_lshrrev_b32 v4, 2, v3
        v_lshlrev_b32 v4, 5, v4
        v_and_b32 v5, 1, v3
        v_lshl_add_u32 v4, v5, 4, v4
        v_bfe_u32 v5, v3, 1, 1
        v_lshl_add_u32 v4, v5, 3, v4
        v_mul_u32_u24 v1, 160, v1
        v_add_u32 v{21+i}, v1, v4
        """)
    a(f"""
    v_lshlrev_b32 v24, 4, v20
    v_add_u32 v25, 4096, v24
    s_lshl_b32 s60, s{S_J8}, 5
    v_mov_b32 v1, s60
    s_lshl_b32 s61, s{S_J8}, 17
    s_add_u32 s61, s61, {KVP_OFF}
    """)
    a("s_mov_b32 s62, 0")
    a.label("L_poll")
    a(f"""
    buffer_load_dword v2, v1, s[{DBG_SRD}:{DBG_SRD+3}], 0 offen sc1
    s_waitcnt vmcnt(0)
    v_readfirstlane_b32 s60, v2
    s_cmp_ge_u32 s60, 16
    s_cbranch_scc1 L_polled
    s_sleep 4
    s_add_u32 s62, s62, 1
    s_cmp_lt_u32 s62, 0x100000
    s_cbranch_scc1 L_poll
    """)
    a.label("L_polled")
    for rb in range(16):
        a(f"buffer_load_dwordx4 v[{32+8*rb}:{32+8*rb+3}], v24, s[{WS_SRD}:{WS_SRD+3}], s61 offen sc1")
        a(f"buffer_load_dwordx4 v[{32+8*rb+4}:{32+8*rb+7}], v25, s[{WS_SRD}:{WS_SRD+3}], s61 offen sc1")
        if rb < 15: a("s_add_u32 s61, s61, 8192")
    for rb in range(1, 16):
        a(f"s_waitcnt vmcnt({2*(15-rb)})")
        for i in range(4):
            a(f"v_pk_add_f32 v[{32+2*i}:{33+2*i}], v[{32+2*i}:{33+2*i}], v[{32+8*rb+2*i}:{33+8*rb+2*i}]")
    for i in range(4): a(f"v_cvt_pk_bf16_f32 v{40+i}, v{32+2*i}, v{33+2*i}")
    a(f"""
    ds_write_b64 v21, v[40:41] offset:{B_KVI}
    v_cmp_gt_u32 vcc, 420, v23
    s_and_saveexec_b64 s[60:61], vcc
    ds_write_b64 v22, v[42:43] offset:{B_KVI}
    v_cmp_lt_u32 vcc, 399, v23
    s_and_b64 exec, exec, vcc
    ds_write_b64 v22, v[42:43] offset:{B_KVI+640}
    s_mov_b64 exec, s[60:61]
    s_waitcnt lgkmcnt(0)
    s_barrier
    s_endpgm
    """)

A_CS, A_CSF, A_RS, A_PW = 0, 5120, 5888, 8192
A_DUMMY = 36 * 1024
A_PK = 73728
def partial_sum_store(a, tag):
    a(f"""
    s_lshl_b32 s60, s3, 6
    v_add_u32 v1, s60, v0
    v_cmp_gt_u32 vcc, 420, v1
    s_and_saveexec_b64 s[60:61], vcc
    s_cbranch_execz L_psskip_{tag}
    v_lshlrev_b32 v1, 4, v1
    """)
    for w in range(4): a(f"ds_read_b128 v[{4+4*w}:{7+4*w}], v1 offset:{A_PW+6720*w}")
    a(f"""
    s_lshl_b32 s62, s{S_J8}, 4
    s_add_u32 s62, s62, s{S_RBLK}
    s_lshl_b32 s62, s62, 13
    s_add_u32 s62, s62, {KVP_OFF}
    s_waitcnt lgkmcnt(0)
    v_pk_add_f32 v[4:5], v[4:5], v[8:9]
    v_pk_add_f32 v[6:7], v[6:7], v[10:11]
    v_pk_add_f32 v[12:13], v[12:13], v[16:17]
    v_pk_add_f32 v[14:15], v[14:15], v[18:19]
    v_pk_add_f32 v[4:5], v[4:5], v[12:13]
    v_pk_add_f32 v[6:7], v[6:7], v[14:15]
    buffer_store_dwordx4 v[4:7], v1, s[{WS_SRD}:{WS_SRD+3}], s62 offen sc1
    """)
    a.label(f"L_psskip_{tag}")
    a("s_mov_b64 exec, s[60:61]")
    a("s_waitcnt vmcnt(0)")

def consumer_epi_A(a):
    a(f"""
    v_and_b32 v1, 31, v0
    s_lshl_b32 s60, s3, 8
    v_lshlrev_b32 v2, 2, v1
    v_add_u32 v2, s60, v2
    ds_write_b32 v2, v22 offset:{A_RS}
    ds_write_b32 v2, v23 offset:{A_RS+128}
    v_lshrrev_b32 v3, 5, v0
    v_lshlrev_b32 v4, 4, v3
    v_add_u32 v4, s60, v4
    s_waitcnt lgkmcnt(0)
    """)
    RS, MRS = 44, 60
    for j in range(4):
        a(f"ds_read_b128 v[{RS+4*j}:{RS+4*j+3}], v4 offset:{A_RS+32*j}")
        a(f"ds_read_b128 v[{MRS+4*j}:{MRS+4*j+3}], v4 offset:{A_RS+128+32*j}")
    a("s_barrier")
    colsum_reduce(a, 160, "cA", A_CS, A_CSF)
    a("s_barrier")
    srd(a, WS_SRD, 14, WS_SIZE)
    a(f"""
    v_and_b32 v1, 31, v0
    v_lshlrev_b32 v2, 2, v1
    """)
    for b in range(5): a(f"ds_read_b32 v{24+2*b}, v2 offset:{A_CSF+128*b}")
    a(f"""
    s_mov_b32 s62, {f32(LOG2E)}
    s_mov_b32 s63, {f32(LOG2E)}
    s_mov_b32 s64, {f32(1e-6)}
    s_mov_b32 s74, {f32(-1e-6)}
    s_mov_b32 s75, {f32(-1e-6)}
    v_mov_b32 v34, s74
    v_cmp_gt_u32 vcc, 16, v1
    v_cndmask_b32 v34, 0, v34, vcc
    v_mov_b32 v35, v34
    s_waitcnt lgkmcnt(0)
    """)
    T = 176
    MV = 208
    for b in range(5):
        acc = ACC0 + 16*b
        for i in range(8):
            if b < 2:
                a(f"v_pk_fma_f32 v[{T+2*i}:{T+2*i+1}], v[{MRS+2*i}:{MRS+2*i+1}], v[{24+2*b}:{25+2*b}], s[74:75] op_sel:[0,0,0] op_sel_hi:[1,0,1]")
            elif b == 2:
                a(f"v_pk_fma_f32 v[{T+2*i}:{T+2*i+1}], v[{MRS+2*i}:{MRS+2*i+1}], v[{24+2*b}:{25+2*b}], v[34:35] op_sel:[0,0,0] op_sel_hi:[1,0,1]")
            else:
                a(f"v_pk_mul_f32 v[{T+2*i}:{T+2*i+1}], v[{MRS+2*i}:{MRS+2*i+1}], v[{24+2*b}:{25+2*b}] op_sel:[0,0] op_sel_hi:[1,0]")
        for i in range(8):
            a(f"v_pk_fma_f32 v[{acc+2*i}:{acc+2*i+1}], v[{acc+2*i}:{acc+2*i+1}], v[{RS+2*i}:{RS+2*i+1}], v[{T+2*i}:{T+2*i+1}] neg_lo:[0,0,1] neg_hi:[0,0,1]")
        if b == 2:
            for i in range(8): a(f"v_cvt_pk_bf16_f32 v{MV+i}, v{acc+2*i}, v{acc+2*i+1}")
        if b <= 2:
            phi_pairs(a, [acc+2*i for i in range(8)], T)
        for i in range(8): a(f"v_cvt_pk_bf16_f32 v{acc+i}, v{acc+2*i}, v{acc+2*i+1}")
    K = [ACC0, ACC0+16, ACC0+32]
    V = {'m': MV, 3: ACC0+48, 4: ACC0+64}
    ONES = 216
    for i in range(4): a(f"v_mov_b32 v{ONES+i}, s69")
    prods = [(0, 'm'), (0, 3), (1, 3), (1, 4), (2, 4)]
    RES = [44, 60, 76, 176, 192, 224, 240, 4]
    lst = [(K[k], V[v]) for k, v in prods] + [(K[k], None) for k in range(3)]
    for t2 in range(2):
        for i, (k, v) in enumerate(lst):
            C = f"v[{RES[i]}:{RES[i]+15}]"
            Bop = f"v[{v+4*t2}:{v+4*t2+3}]" if v is not None else f"v[{ONES}:{ONES+3}]"
            a(f"v_mfma_f32_32x32x16_bf16 {C}, v[{k+4*t2}:{k+4*t2+3}], {Bop}, {C if t2 else 0}")
    a(f"""
    v_and_b32 v1, 31, v0
    v_lshrrev_b32 v3, 5, v0
    s_mul_i32 s60, s3, 6720
    s_add_u32 s60, s60, {A_PW}
    v_mov_b32 v30, {A_DUMMY}
    v_lshl_add_u32 v30, v0, 4, v30
    """)
    eo = {'m': -16, 3: 16, 4: 48}
    for i, vb in enumerate(['m', 3, 4]):
        a(f"""
        v_add_u32 v2, {eo[vb] & 0xffffffff}, v1
        v_mul_u32_u24 v28, 205, v2
        v_lshrrev_b32 v28, 12, v28
        v_mul_u32_u24 v28, 5, v28
        v_sub_u32 v{24+i}, v3, v28
        v_mul_u32_u24 v2, 5, v2
        v_add_u32 v2, v2, v{24+i}
        v_lshlrev_b32 v2, 4, v2
        v_add_u32 v{20+i}, s60, v2
        """)
        if vb == 'm':
            a("v_cmp_gt_u32 vcc, 16, v1\nv_mov_b32 v28, 1000\nv_cndmask_b32 v24, v24, v28, vcc")
    vidx = {'m': 0, 3: 1, 4: 2}
    for i, (k, v) in enumerate(prods):
        for j in range(4):
            c = 8*k + 2*j
            if c >= 20: continue
            ok = False
            for n in range(32):
                e = eo[v] + n
                if e < 0: continue
                for hf in range(2):
                    if 0 <= c + hf - 5*(e//20) < 5: ok = True
            if not ok: continue
            a(f"v_add_u32 v28, {c}, v{24+vidx[v]}")
            a(f"v_add_u32 v29, {c*16}, v{20+vidx[v]}")
            a("v_cmp_gt_u32 vcc, 5, v28")
            a("v_cndmask_b32 v29, v30, v29, vcc")
            a(f"ds_write_b128 v29, v[{RES[i]+4*j}:{RES[i]+4*j+3}]")
    a(f"""
    v_lshlrev_b32 v2, 4, v3
    v_add_u32 v2, s60, v2
    s_mov_b32 exec_lo, 1
    s_mov_b32 exec_hi, 1
    """)
    for k in range(3):
        for j in range(4):
            c = 8*k + 2*j
            if c >= 20: continue
            a(f"ds_write_b128 v2, v[{RES[5+k]+4*j}:{RES[5+k]+4*j+3}] offset:{(400+c)*16}")
    a("s_mov_b64 exec, -1")
    a("s_waitcnt lgkmcnt(0)")
    a("s_barrier")
    partial_sum_store(a, "cA")
    a("s_barrier")
    srd(a, DBG_SRD, 12, 256)
    a(f"""
    s_cmp_eq_u32 s3, 0
    s_cbranch_scc0 L_cA_end
    s_lshl_b32 s60, s{S_J8}, 5
    v_mov_b32 v1, s60
    v_mov_b32 v2, 1
    s_mov_b64 exec, 1
    buffer_atomic_add v2, v1, s[{DBG_SRD}:{DBG_SRD+3}], 0 offen sc1
    """)
    a.label("L_cA_end")
    a("s_endpgm")

def loader_epi_A(a):
    a(f"""
    s_lshl_b32 s60, s{S_RBLK}, 3
    s_add_u32 s60, s60, s{S_J8}
    s_lshl_b32 s60, s60, 2
    s_add_u32 s70, s60, s50
    v_lshrrev_b32 v1, 3, v0
    v_mul_u32_u24 v1, 1280, v1
    v_and_b32 v2, 7, v0
    v_lshl_add_u32 v20, v2, 4, v1
    s_lshl_b32 s71, s50, 13
    s_add_u32 s71, s71, {A_PK}
    s_mov_b32 s72, s70
    s_mov_b32 s73, s71
    """)
    a.label("L_pkld")
    a(f"""
    s_mul_i32 s60, s72, 6554
    s_lshr_b32 s60, s60, 16
    s_mul_i32 s61, s60, 10
    s_sub_u32 s61, s72, s61
    s_mov_b32 s62, {640*1280}
    s_cmp_lt_u32 s60, 48
    s_cselect_b32 s{PK_SRD}, s10, s16
    s_cselect_b32 s{PK_SRD+1}, s11, s17
    s_cselect_b32 s{PK_SRD+2}, {1536*1280}, s62
    s_cselect_b32 s62, 0, 48
    s_and_b32 s{PK_SRD+1}, s{PK_SRD+1}, 0xffff
    s_mov_b32 s{PK_SRD+3}, 0x20000
    s_sub_u32 s60, s60, s62
    s_mul_i32 s60, s60, 40960
    s_lshl_b32 s61, s61, 7
    s_add_u32 s60, s60, s61
    """)
    for i in range(4):
        a(f"s_add_u32 m0, s73, {i*1024}")
        a(f"buffer_load_dwordx4 v20, s[{PK_SRD}:{PK_SRD+3}], s60 offen lds")
        if i < 3: a("s_add_u32 s60, s60, 10240")
    a(f"""
    s_add_u32 s72, s72, 512
    s_add_u32 s73, s73, 4096
    s_cmp_lt_u32 s72, 680
    s_cbranch_scc1 L_pkld
    s_barrier
    s_barrier
    """)
    colsum_reduce(a, 160, "lA", A_CS, A_CSF)
    a("s_barrier")
    srd(a, WS_SRD, 14, WS_SIZE)
    a("s_barrier")
    partial_sum_store(a, "lA")
    a("s_barrier")
    a(f"""
    v_lshrrev_b32 v1, 5, v0
    v_bfe_u32 v2, v0, 4, 1
    v_bfe_u32 v3, v0, 2, 2
    v_lshlrev_b32 v1, 4, v1
    v_lshl_add_u32 v1, v2, 2, v1
    v_add_u32 v1, v1, v3
    v_lshlrev_b32 v1, 7, v1
    v_and_b32 v2, 3, v0
    v_lshl_add_u32 v1, v2, 3, v1
    v_add_u32 v1, s71, v1
    v_lshlrev_b32 v2, 4, v0
    s_mov_b32 s72, s70
    """)
    a.label("L_pkst")
    for q in range(4):
        for rd in range(2):
            a(f"ds_read_b64_tr_b16 v[{8+4*q+2*rd}:{9+4*q+2*rd}], v1 offset:{rd*1024+q*32}")
    a(f"""
    s_mul_i32 s60, s72, 6554
    s_lshr_b32 s60, s60, 16
    s_mul_i32 s61, s60, 10
    s_sub_u32 s61, s72, s61
    s_lshl_b32 s61, s61, 2
    s_mul_i32 s60, s60, 5120
    s_add_u32 s60, s60, {WP_OFF}
    s_waitcnt lgkmcnt(0)
    """)
    for q in range(4):
        a(f"""
        s_add_u32 s62, s61, {q}
        s_mul_i32 s63, s62, 205
        s_lshr_b32 s63, s63, 10
        s_mul_i32 s64, s63, 5
        s_sub_u32 s62, s62, s64
        s_lshl_b32 s62, s62, 10
        s_mul_i32 s63, s63, {NKS*5120}
        s_add_u32 s62, s62, s63
        s_add_u32 s62, s62, s60
        buffer_store_dwordx4 v[{8+4*q}:{11+4*q}], v2, s[{WS_SRD}:{WS_SRD+3}], s62 offen
        """)
    a(f"""
    s_add_u32 s72, s72, 512
    v_add_u32 v1, 4096, v1
    s_cmp_lt_u32 s72, 680
    s_cbranch_scc1 L_pkst
    s_endpgm
    """)

def gen_k1():
    a = Asm()
    a(".p2align 8\n.globl k1_kernel\n.type k1_kernel,@function")
    a.label("k1_kernel")
    a(f"""
    s_cmp_ge_u32 s2, 256
    s_cbranch_scc1 L_k1_exit
    s_load_dwordx4 s[4:7], s[0:1], 0
    s_load_dwordx4 s[8:11], s[0:1], 32
    s_load_dwordx4 s[12:15], s[0:1], 56
    s_load_dwordx2 s[16:17], s[0:1], 16
    v_lshrrev_b32 v1, 6, v0
    v_and_b32 v0, 63, v0
    v_readfirstlane_b32 s3, v1
    s_and_b32 s47, s2, 7
    s_lshr_b32 s48, s2, 3
    s_and_b32 s44, s47, 1
    s_lshl_b32 s44, s44, 3
    s_and_b32 s49, s48, 7
    s_or_b32 s44, s44, s49
    s_lshr_b32 s48, s48, 3
    s_and_b32 s45, s47, 6
    s_and_b32 s49, s48, 1
    s_or_b32 s45, s45, s49
    s_lshr_b32 s46, s48, 1
    s_cmp_ge_u32 s3, 4
    s_cbranch_scc0 L_cons
    s_cmp_eq_u32 s46, 0
    s_cbranch_scc1 L_ldA
    """)
    loader_setup(a, 'B'); loader_main(a, 'B'); loader_epi_B(a)
    a.label("L_ldA")
    loader_setup(a, 'A'); loader_main(a, 'A'); loader_epi_A(a)
    a.label("L_cons")
    a("s_cmp_eq_u32 s46, 0\ns_cbranch_scc1 L_coA")
    consumer_main(a, 'B'); a("s_waitcnt lgkmcnt(0)"); consumer_epi_B(a)
    a.label("L_coA")
    consumer_main(a, 'A'); consumer_epi_A(a)
    a.label("L_k1_exit")
    a("s_endpgm")
    return a

def gen_k2():
    a = Asm()
    a(".p2align 8\n.globl k2_kernel\n.type k2_kernel,@function")
    a.label("k2_kernel")
    a(f"""
    s_cmp_ge_u32 s2, 256
    s_cbranch_scc1 L_k2_exit
    s_load_dwordx2 s[8:9], s[0:1], 64
    s_load_dwordx2 s[4:5], s[0:1], 0
    s_load_dwordx2 s[6:7], s[0:1], 48
    v_lshrrev_b32 v1, 6, v0
    v_mov_b32 v3, v0
    v_readfirstlane_b32 s3, v1
    v_and_b32 v0, 63, v0
    s_and_b32 s47, s2, 7
    s_lshr_b32 s48, s2, 3
    s_lshr_b32 s44, s47, 1
    s_lshl_b32 s44, s44, 3
    s_and_b32 s49, s48, 7
    s_or_b32 s44, s44, s49
    s_and_b32 s45, s47, 1
    s_lshl_b32 s45, s45, 2
    s_lshr_b32 s48, s48, 3
    s_or_b32 s45, s45, s48
    s_mul_i32 s50, s44, {NKS}
    s_add_u32 s50, s50, s3
    s_lshl_b32 s50, s50, 12
    s_mul_i32 s51, s45, {NKS}
    s_add_u32 s51, s51, s3
    s_mul_i32 s51, s51, 5120
    s_add_u32 s51, s51, {WP_OFF}
    v_lshlrev_b32 v1, 4, v0
    v_add_u32 v2, 4096, v1
    s_waitcnt lgkmcnt(0)
    """)
    srd(a, 12, 8, WS_SIZE)
    D = 7
    def loads(i):
        base = 4 + 36*(i % D)
        for m in range(4):
            a(f"buffer_load_dwordx4 v[{base+4*m}:{base+4*m+3}], v1, s[12:15], s50 offen offset:{1024*m}")
        for nb in range(5):
            r = base + 16 + 4*nb
            if nb < 4: a(f"buffer_load_dwordx4 v[{r}:{r+3}], v1, s[12:15], s51 offen offset:{1024*nb}")
            else: a(f"buffer_load_dwordx4 v[{r}:{r+3}], v2, s[12:15], s51 offen")
        a("s_add_u32 s50, s50, 16384\ns_add_u32 s51, s51, 20480")
    for i in range(D): loads(i)
    srd(a, 16, 4, 2048*1280)
    srd(a, 20, 6, 2048*1280)
    a(f"s_mul_i32 s52, s44, {64*1280}\ns_mul_i32 s53, s45, 160\ns_add_u32 s52, s52, s53")
    NST = 17
    for i in range(NST):
        infl = min(D, NST - i) - 1
        extra = 5 if i >= 11 else 0
        a(f"s_waitcnt vmcnt({9*infl + extra})")
        base = 4 + 36*(i % D)
        for m in range(4):
            for nb in range(5):
                C = f"a[{(m*5+nb)*4}:{(m*5+nb)*4+3}]"
                a(f"v_mfma_f32_16x16x32_bf16 {C}, v[{base+16+4*nb}:{base+19+4*nb}], v[{base+4*m}:{base+4*m+3}], {C if i else 0}")
        if i + D < NST: loads(i + D)
        if i == 10:
            for u in range(5):
                a(f"""
                v_add_u32 v112, {256*u}, v3
                v_mul_u32_u24 v113, 3277, v112
                v_lshrrev_b32 v113, 16, v113
                v_mul_u32_u24 v114, 20, v113
                v_sub_u32 v114, v112, v114
                v_mul_u32_u24 v115, 336, v113
                v_lshl_add_u32 v{116+u}, v114, 4, v115
                v_mul_u32_u24 v115, 1280, v113
                v_lshl_add_u32 v{121+u}, v114, 3, v115
                buffer_load_dwordx2 v[{126+2*u}:{127+2*u}], v{121+u}, s[16:19], s52 offen
                """)
    a(f"""
    v_and_b32 v4, 15, v0
    v_mul_u32_u24 v4, 336, v4
    v_lshrrev_b32 v5, 4, v0
    v_lshl_add_u32 v4, v5, 4, v4
    s_mul_i32 s60, s3, 21504
    v_add_u32 v4, s60, v4
    """)
    for m in range(4):
        for nb in range(5):
            a(f"ds_write_b128 v4, a[{(m*5+nb)*4}:{(m*5+nb)*4+3}] offset:{m*5376+nb*64}")
    a("s_waitcnt lgkmcnt(0)\ns_barrier")
    for u in range(5):
        for w in range(4):
            a(f"ds_read_b128 v[{4+16*u+4*w}:{7+16*u+4*w}], v{116+u} offset:{w*21504}")
    a("s_waitcnt vmcnt(0)")
    for u in range(5):
        b = 4 + 16*u
        a(f"s_waitcnt lgkmcnt({min(15,4*(4-u))})")
        a(f"""
        v_lshlrev_b32 v140, 16, v{126+2*u}
        v_and_b32 v141, 0xffff0000, v{126+2*u}
        v_lshlrev_b32 v142, 16, v{127+2*u}
        v_and_b32 v143, 0xffff0000, v{127+2*u}
        v_pk_add_f32 v[{b}:{b+1}], v[{b}:{b+1}], v[{b+4}:{b+5}]
        v_pk_add_f32 v[{b+2}:{b+3}], v[{b+2}:{b+3}], v[{b+6}:{b+7}]
        v_pk_add_f32 v[{b+8}:{b+9}], v[{b+8}:{b+9}], v[{b+12}:{b+13}]
        v_pk_add_f32 v[{b+10}:{b+11}], v[{b+10}:{b+11}], v[{b+14}:{b+15}]
        v_pk_add_f32 v[{b}:{b+1}], v[{b}:{b+1}], v[140:141]
        v_pk_add_f32 v[{b+2}:{b+3}], v[{b+2}:{b+3}], v[142:143]
        v_pk_add_f32 v[{b}:{b+1}], v[{b}:{b+1}], v[{b+8}:{b+9}]
        v_pk_add_f32 v[{b+2}:{b+3}], v[{b+2}:{b+3}], v[{b+10}:{b+11}]
        v_cvt_pk_bf16_f32 v{b+4}, v{b}, v{b+1}
        v_cvt_pk_bf16_f32 v{b+5}, v{b+2}, v{b+3}
        buffer_store_dwordx2 v[{b+4}:{b+5}], v{121+u}, s[20:23], s52 offen
        """)
    a.label("L_k2_exit")
    a("s_endpgm")
    return a

def kd(name, vgpr, accum, sgpr=96):
    return f""".p2align 6
.amdhsa_kernel {name}
  .amdhsa_next_free_vgpr {vgpr}
  .amdhsa_next_free_sgpr {sgpr}
  .amdhsa_accum_offset {accum}
  .amdhsa_group_segment_fixed_size 0
  .amdhsa_kernarg_size 72
  .amdhsa_user_sgpr_count 2
  .amdhsa_user_sgpr_kernarg_segment_ptr 1
  .amdhsa_system_sgpr_workgroup_id_x 1
.end_amdhsa_kernel
"""

def main(out):
    k1 = gen_k1(); k2 = gen_k2()
    for k in (k1, k2):
        k.fix()
        for e in k.check_backedges(): print("WARN", e, file=sys.stderr)
    hdr = """; fused LN + (linear attention || relu FFN) + residual, two launches
; @launch kernel=k1_kernel grid=(256,1,1) block=(512,1,1) lds=163840
; @launch kernel=k2_kernel grid=(256,1,1) block=(256,1,1) lds=86016
.amdgcn_target "amdgcn-amd-amdhsa--gfx950"
.text
"""
    s = hdr + k1.text() + k2.text() + '.section .rodata,"a"\n' + kd("k1_kernel", 256, 256) + kd("k2_kernel", 336, 256)
    open(out, "w").write(s)

if __name__ == "__main__":
    main(sys.argv[1] if len(sys.argv) > 1 else f"cdna_kernels/{NAME}.s")
```
